```python
import torch

def _softmax(x, axis=-1):
    return torch.softmax(x, dim=axis)
def _gelu(x):
    return torch.nn.functional.gelu(x, approximate="tanh")
def _silu(x):
    return torch.nn.functional.silu(x)
def _sigmoid(x):
    return torch.sigmoid(x)
def _layernorm(x, axis=-1, eps=1e-5):
    m = x.mean(dim=axis, keepdim=True)
    v = x.var(dim=axis, keepdim=True, unbiased=False)
    return (x - m) / torch.sqrt(v + eps)
def _scatter_add(tgt, idx, src, axis=0):
    return tgt.clone().index_add_(axis, idx, src)
def _segment_sum(src, seg, n):
    out = torch.zeros((n,) + src.shape[1:], dtype=src.dtype)
    return out.index_add_(0, seg, src)
def _pad(x, pw):
    flat = tuple(v for pair in reversed(pw) for v in pair)
    return torch.nn.functional.pad(x, flat)

kernel_name = 'concat_heads__compressed_kv_cla__sliding_block_cached__decode'

def setup_inputs():

    _w = (lambda a: (lambda t: t.to(torch.bfloat16) if t.is_floating_point() else t)(torch.as_tensor(a)))
    def _A_setup():
        B, H, Sq, Sk, D, M = 1, 32, 1, 8192, 128, 576
        Dc = 4 * D
        return {
            "x": _w((lambda *s: torch.randn(*s, dtype=torch.bfloat16) * 3.2)(B, Sq, M)),
            "c_kv": _w((lambda *s: torch.randn(*s, dtype=torch.bfloat16) * 0.1)(B, Sk, Dc)),
            "w_q": _w((lambda *s: torch.randn(*s, dtype=torch.bfloat16) * 6.4)(M, H, D) * (M ** -0.5)),
            "w_uk": _w((lambda *s: torch.randn(*s, dtype=torch.bfloat16) * 6.4)(Dc, H, D) * (Dc ** -0.5)),
            "w_uv": _w((lambda *s: torch.randn(*s, dtype=torch.bfloat16) * 0.1)(Dc, H, D) * (Dc ** -0.5)),
            "w_o": _w((lambda *s: torch.randn(*s, dtype=torch.bfloat16) * 0.1)(H, D, M) * ((H * D) ** -0.5)),
        }
    _A_in = _A_setup()

    def _B_setup():
        B, Sq, D = 1, 1, 576
        Hq, Hkv, Sk, Dh = 32, 16, 8192, 128
        assert Hq % Hkv == 0, (Hq, Hkv)
        return {
            "x": _w((lambda *s: torch.randn(*s, dtype=torch.bfloat16) * 1.6)(B, Sq, D)),
            "k_cache": _w((lambda *s: torch.randn(*s, dtype=torch.bfloat16) * 1.6)(B, Hkv, Sk, Dh)),
            "v_cache": _w((lambda *s: torch.randn(*s, dtype=torch.bfloat16) * 0.05)(B, Hkv, Sk, Dh)),
            "wq": _w((lambda *s: torch.randn(*s, dtype=torch.bfloat16) * 1.6)(D, Hq * Dh) * (D ** -0.5)),
            "wo": _w((lambda *s: torch.randn(*s, dtype=torch.bfloat16) * 0.05)(Hq * Dh, D) * ((Hq * Dh) ** -0.5)),
        }
    _B_in = _B_setup()

    return {
        "A_x": _A_in["x"],
        "A_c_kv": _A_in["c_kv"],
        "A_w_q": _A_in["w_q"],
        "A_w_uk": _A_in["w_uk"],
        "A_w_uv": _A_in["w_uv"],
        "A_w_o": _A_in["w_o"],
        "B_x": _B_in["x"],
        "B_k_cache": _B_in["k_cache"],
        "B_v_cache": _B_in["v_cache"],
        "B_wq": _B_in["wq"],
        "B_wo": _B_in["wo"],
    }

def reference(A_x, A_c_kv, A_w_q, A_w_uk, A_w_uv, A_w_o, B_x, B_k_cache, B_v_cache, B_wq, B_wo):
    def _A_ref(x, c_kv, w_q, w_uk, w_uv, w_o):
        B, Sq, M = x.shape[0], x.shape[1], x.shape[2]
        Sk = c_kv.shape[1]
        H, D = w_q.shape[1], w_q.shape[2]
        q = torch.einsum("bqm,mhd->bhqd", x, w_q)
        k = torch.einsum("bkc,chd->bhkd", c_kv, w_uk)
        v = torch.einsum("bkc,chd->bhkd", c_kv, w_uv)
        scores = torch.einsum("bhqd,bhkd->bhqk", q, k) * (D ** -0.5)
        off = Sk - Sq
        qi = torch.arange(Sq)[:, None]
        kj = torch.arange(Sk)[None, :]
        cmask = kj <= (qi + off)
        scores = torch.where(cmask[None, None], scores, -1e9)
        p = _softmax(scores, axis=-1)
        ctx = torch.einsum("bhqk,bhkd->bhqd", p, v)
        return torch.einsum("bhqd,hdm->bqm", ctx, w_o)

    def _B_ref(x, k_cache, v_cache, wq, wo):
        B, Sq, D = x.shape
        Hq, Dh = 32, 128
        Hkv, Sk = k_cache.shape[1], k_cache.shape[2]
        W = min(4096, max(256, Sk // 4))
        rep = Hq // Hkv
        q = (lambda x, *d: x.permute(*d))((x @ wq).reshape(B, Sq, Hq, Dh), 0, 2, 1, 3)
        k = (lambda x, n, axis: torch.repeat_interleave(x, n, dim=axis))(k_cache[:, :, Sk - W:, :], rep, axis=1)
        v = (lambda x, n, axis: torch.repeat_interleave(x, n, dim=axis))(v_cache[:, :, Sk - W:, :], rep, axis=1)
        scores = torch.einsum("bhqd,bhkd->bhqk", q, k) * (Dh ** -0.5)
        p = _softmax(scores, axis=-1)
        o = torch.einsum("bhqk,bhkd->bhqd", p, v)
        return (lambda x, *d: x.permute(*d))(o, 0, 2, 1, 3).reshape(B, Sq, Hq * Dh) @ wo

    a = _A_ref(A_x, A_c_kv, A_w_q, A_w_uk, A_w_uv, A_w_o)
    b = _B_ref(B_x, B_k_cache, B_v_cache, B_wq, B_wo)
    return torch.concatenate([a, b], axis=-1)
```

```python
NAME = 'concat_heads__compressed_kv_cla__sliding_block_cached__decode'
HEADER = open('cdna_kernels/%s.s.ref' % NAME).read().split('; Override launch')[0]
class Asm:
    def __init__(self):
        self.lines = []
    def __call__(self, s=''):
        for l in s.split('\n'):
            self.lines.append(l)
    def text(self):
        return '\n'.join(self.lines) + '\n'
def wrap(body, grid, block, lds, vgpr=256, sgpr=102, accum=256, name=NAME + '_kernel'):
    return (HEADER + f'; @launch grid=({grid},1,1) block=({block},1,1) lds={lds}\n'
      + '.amdgcn_target "amdgcn-amd-amdhsa--gfx950"\n.text\n'
      + f'.globl {name}\n.p2align 8\n.type {name},@function\n{name}:\n' + body
      + '.section .rodata,"a"\n.p2align 6\n'
      + f'.amdhsa_kernel {name}\n  .amdhsa_next_free_vgpr {vgpr}\n  .amdhsa_next_free_sgpr {sgpr}\n  .amdhsa_accum_offset {accum}\n'
      + '  .amdhsa_group_segment_fixed_size 0\n  .amdhsa_kernarg_size 112\n  .amdhsa_user_sgpr_count 2\n'
      + '  .amdhsa_user_sgpr_kernarg_segment_ptr 1\n  .amdhsa_system_sgpr_workgroup_id_x 1\n.end_amdhsa_kernel\n')
```

```python
import re
TRANS = ('v_exp_f32','v_log_f32','v_rcp_f32','v_rsq_f32','v_sqrt_f32','v_sin_f32','v_cos_f32')
def regs_of(op):
    op = op.strip()
    op = op.lstrip('-')
    m = re.fullmatch(r'abs\((.*)\)', op)
    if m: op = m.group(1)
    m = re.fullmatch(r'([vsa])\[(\d+):(\d+)\]', op)
    if m: return {(m.group(1), i) for i in range(int(m.group(2)), int(m.group(3)) + 1)}
    m = re.fullmatch(r'([vsa])(\d+)', op)
    if m: return {(m.group(1), int(m.group(2)))}
    if op in ('vcc', 'vcc_lo', 'vcc_hi'): return {('vcc', 0)}
    if op in ('exec', 'exec_lo', 'exec_hi'): return {('exec', 0)}
    if op == 'm0': return {('m0', 0)}
    return set()
class Ins:
    def __init__(self, line):
        self.line = line
        body = line.split(';')[0].strip()
        parts = body.split(None, 1)
        self.mn = parts[0]
        rest = parts[1] if len(parts) > 1 else ''
        ops, depth, cur = [], 0, ''
        for ch in rest:
            if ch in '[(': depth += 1
            if ch in '])': depth -= 1
            if ch == ',' and depth == 0:
                ops.append(cur.strip()); cur = ''
            else: cur += ch
        if cur.strip(): ops.append(cur.strip())
        self.mods = ''
        if ops:
            last = ops[-1].split(None, 1)
            ops[-1] = last[0]
            self.mods = last[1] if len(last) > 1 else ''
        self.ops = ops
        mn = self.mn
        self.mfma = mn.startswith('v_mfma')
        self.valu = mn.startswith('v_') and not self.mfma
        self.trans = mn.replace('_e32','').replace('_e64','') in TRANS
        self.dpp = self.valu and ('_dpp' in mn or 'row_' in self.mods or 'quad_perm' in self.mods)
        self.perml = mn.startswith('v_permlane')
        self.rdlane = mn.startswith('v_readlane') or mn.startswith('v_readfirstlane')
        self.vmem = mn.startswith(('global_', 'buffer_', 'flat_'))
        self.ds = mn.startswith('ds_')
        self.salu = mn.startswith('s_')
        R = [regs_of(o) for o in ops]
        w, r = set(), set()
        isld = self.vmem and 'load' in mn and not ('lds' in mn or re.search(r'\blds\b', self.mods))
        if self.mfma:
            w = R[0]; r = R[1] | R[2] | R[3]; self.srcC = R[3]; self.srcAB = R[1] | R[2]
        elif self.perml:
            w = R[0] | R[1]; r = R[0] | R[1]
        elif self.valu:
            w = set(R[0]); r = set().union(*R[1:]) if len(R) > 1 else set()
            if mn.startswith(('v_add_co', 'v_sub_co', 'v_addc_co', 'v_subb_co')):
                w |= R[1]; r = set().union(*R[2:])
            if mn.startswith(('v_fmac', 'v_dot2c', 'v_writelane')) or self.dpp: r |= R[0]
            if mn.startswith('v_cmpx'): w |= {('exec', 0)}
        elif isld or (self.ds and ('read' in mn or 'permute' in mn or 'swizzle' in mn)):
            w = R[0]; r = set().union(*R[1:]) if len(R) > 1 else set()
        elif self.vmem or self.ds:
            r = set().union(*R) if R else set()
        elif self.salu:
            if mn.startswith(('s_cmp', 's_cbranch', 's_branch', 's_waitcnt', 's_barrier', 's_nop', 's_endpgm', 's_setprio', 's_sleep', 's_bitcmp')):
                r = set().union(*R) if R else set()
            else:
                w = R[0] if R else set(); r = set().union(*R[1:]) if len(R) > 1 else set()
                if 'saveexec' in mn: w = w | {('exec', 0)}
        self.w, self.r = w, r
        self.slots = 1
        if mn == 's_nop': self.slots = int(ops[0], 0) + 1
        self.widestore = (self.vmem and 'store' in mn and ('x3' in mn or 'x4' in mn))
        if self.mfma:
            self.passes = 8 if '32x32' in mn else 4
def need(p, c):
    n = 0
    vw = {x for x in p.w if x[0] in 'va' and x[0] != 'vcc'}
    sw = {x for x in p.w if x[0] in ('s', 'vcc')}
    if p.valu:
        if c.mfma and vw & c.r: n = max(n, 2)
        if c.dpp and vw & c.r: n = max(n, 2)
        if c.perml and vw & c.r: n = max(n, 2)
        if c.rdlane and vw & c.r: n = max(n, 1)
        if p.trans and c.valu and not c.trans and vw & c.r: n = max(n, 1)
        if p.trans and (c.trans) and vw & c.r: n = max(n, 1)
        if sw:
            if c.valu and sw & c.r: n = max(n, 4 if (c.mn.startswith('v_readlane') or c.mn.startswith('v_writelane')) else 2)
            if c.vmem and sw & c.r: n = max(n, 5)
            if c.salu and sw & c.r: n = max(n, 2)
            if c.mn.startswith(('s_cbranch_vcc')) and ('vcc', 0) in sw: n = max(n, 2)
        if ('exec', 0) in p.w and (c.salu or c.dpp or c.perml or c.mfma or c.rdlane or ('exec', 0) in c.r): n = max(n, 5)
    if p.mfma:
        D = p.w
        t = {4: 8, 8: 12}[p.passes]
        if c.mfma:
            if D & c.srcAB: n = max(n, t)
            if D & c.srcC and c.srcC != D: n = max(n, {4: 6, 8: 10}[p.passes])
            if D & c.w and c.srcC != D: n = max(n, t)
        elif (c.valu or c.vmem or c.ds) and D & (c.r | c.w): n = max(n, t)
        if c.valu and p.srcC & c.w: n = max(n, {4: 3, 8: 7}[p.passes])
    if p.salu and ('m0', 0) in p.w and c.vmem and ('lds' in c.mn or re.search(r'\blds\b', c.mods)): n = max(n, 1)
    if p.salu and ('exec', 0) in p.w and (c.dpp or c.perml or c.mfma): n = max(n, 1)
    if p.widestore and (c.valu or c.mfma or c.ds or c.vmem) and (p.r & c.w): n = max(n, 2)
    return n
def pad(lines):
    out, hist = [], []
    for line in lines:
        s = line.split(';')[0].strip()
        if not s or s.startswith('.') and not s.endswith(':'):
            out.append(line); continue
        if s.endswith(':'):
            out.append(line); continue
        ins = Ins(line)
        dist, req = 0, 0
        for p in reversed(hist):
            req = max(req, need(p, ins) - dist)
            dist += p.slots
            if dist >= 14: break
        if req > 0:
            nop = Ins(f's_nop {req-1}')
            out.append(f'    s_nop {req-1}'); hist.append(nop)
        out.append('    ' + line.strip()); hist.append(ins)
        if len(hist) > 32: hist = hist[-32:]
    return out
class Prog:
    def __init__(self):
        self.lines = []
        self.vm = []
        self.uid = 0
    def __call__(self, s):
        for l in s.split('\n'):
            if l.strip(): self.lines.append(l.strip())
    def label(self, base):
        self.uid += 1
        return f'L_{base}_{self.uid}'
    def vmem(self, s, tag=None):
        self(s); self.vm.append(tag)
    def wait_vm(self, tag, extra=''):
        idx = max(i for i, t in enumerate(self.vm) if t == tag)
        n = len(self.vm) - 1 - idx
        assert n <= 63
        self(f's_waitcnt vmcnt({n}) {extra}'.strip())
        self.vm = self.vm[idx + 1:]
    def wait_vm0(self, extra=''):
        self(f's_waitcnt vmcnt(0) {extra}'.strip()); self.vm = []
    def text(self):
        return '\n'.join(pad(self.lines)) + '\n'
```

```python
import sys
from gcn import Prog
from asmlib import wrap, NAME

QPA, QPB, QABS, QFLAG = 0x10000, 0x30000, 0x50000, 0x58000
H3, H4, H3B, H3BML, H5, STAMP = 0x100000, 0x400000, 0x480000, 0x4C0000, 0x500000, 0x800000
C1 = 0.08838834764831845 * 1.4426950408889634
import struct
def f2u(x): return struct.unpack('<I', struct.pack('<f', x))[0]
AX, CKV, WQ, WUK, WUV, WO, BX, KC, VC, BWQ, BWO, OUT, WS = [f's[{36+2*i}:{37+2*i}]' for i in range(13)]
sE, sT, sW, sI = 's62', 's63', 's3', 's4'
ST = 'sc1'
LD = 'sc1'
NT = 'nt'
SPIN = 20000

class G(Prog):
    def __init__(self, stamps):
        super().__init__(); self.stamps = stamps; self.nst = 0
    def stamp(self, i):
        if self.stamps: self(f's_memrealtime s[{72+2*i}:{73+2*i}]')
    def flush_stamps(self):
        if not self.stamps: return
        self('s_waitcnt lgkmcnt(0)')
        self(f's_lshl_b32 s5, s2, 3\ns_add_u32 s5, s5, {sW}\ns_lshl_b32 s5, s5, 6\ns_add_u32 s5, s5, {STAMP}')
        self('s_mov_b64 exec, 1\nv_mov_b32 v250, s5')
        for q in range(3):
            for k in range(4): self(f'v_mov_b32 v{240+k}, s{72+2*(4*q+k)}')
            self(f'global_store_dwordx4 v250, v[240:243], {WS} offset:{16*q}')
            self('s_nop 1')
        self('s_mov_b64 exec, -1')
    def exec_(self, lo, hi):
        self(f's_mov_b32 exec_lo, {lo:#x}\ns_mov_b32 exec_hi, {hi:#x}')
    def exec_all(self): self('s_mov_b64 exec, -1')
    def diagA(self, dst, pk):
        for r in range(4): self(f'v_and_b32 v{dst+r}, v{pk}, v{5+r}')
    def allred_hi(self, op, v, tmp, bits):
        for b in bits:
            if b == 3:
                for x in v: self(f'{op}_dpp v{x}, v{x}, v{x} row_ror:8 row_mask:0xf bank_mask:0xf')
            else:
                ins = 'v_permlane16_swap_b32' if b == 4 else 'v_permlane32_swap_b32'
                for k, x in enumerate(v): self(f'v_mov_b32 v{tmp+k}, v{x}')
                for k, x in enumerate(v): self(f'{ins} v{x}, v{tmp+k}')
                for k, x in enumerate(v): self(f'{op} v{x}, v{x}, v{tmp+k}')
    def allred_lo(self, op, v):
        for m in ('quad_perm:[1,0,3,2]', 'quad_perm:[2,3,0,1]', 'row_half_mirror'):
            for x in v: self(f'{op}_dpp v{x}, v{x}, v{x} {m} row_mask:0xf bank_mask:0xf')
    def poll(self, loads, tags, name, pre_wait=None):
        L, Lok = self.label(name), self.label(name + 'ok')
        self('s_mov_b32 s5, 0')
        self(f'{L}:')
        for l in loads: self(l)
        self('s_waitcnt vmcnt(0)')
        self.check(tags)
        self(f's_cbranch_scc1 {Lok}')
        self(f's_add_u32 s5, s5, 1\ns_cmp_lt_u32 s5, {SPIN}\ns_cbranch_scc1 {L}\ns_branch L_end')
        self(f'{Lok}:')
        self.vm = []
    def check(self, tags):
        for t in tags: self(f'v_cmpx_eq_u32 vcc, v9, v{t}')
        self('s_mov_b64 exec, -1')
        self('s_cmp_eq_u64 vcc, -1')
    def gemv32(self, val, A, W, acc, tmp):
        for t in range(4):
            self(f'v_cvt_pk_bf16_f32 v{tmp}, v{val+t}, v{val+t}')
            self.diagA(A + 4*t, tmp)
    def gemv32_mm(self, A, W, acc):
        for t in range(4):
            c = '0' if t == 0 else f'v[{acc}:{acc+3}]'
            self(f'v_mfma_f32_16x16x32_bf16 v[{acc}:{acc+3}], v[{A+4*t}:{A+4*t+3}], v[{W+4*t}:{W+4*t+3}], {c}')
    def fold(self, acc):
        self(f'v_permlane32_swap_b32 v{acc}, v{acc+2}')
        self(f'v_permlane32_swap_b32 v{acc+1}, v{acc+3}')
        self(f'v_add_f32_dpp v{acc}, v{acc+2}, v{acc} row_ror:8 row_mask:0xf bank_mask:0xf')
        self(f'v_add_f32_dpp v{acc+1}, v{acc+3}, v{acc+1} row_ror:8 row_mask:0xf bank_mask:0xf')
        self(f'v_cvt_pk_bf16_f32 v{acc}, v{acc}, v{acc+1}')
        self(f'v_mov_b32 v{acc+1}, v9')

def prologue(g):
    g(f'''
    s_cmp_ge_u32 s2, 256
    s_cbranch_scc1 L_exit
    s_load_dwordx16 s[36:51], s[0:1], 0
    s_load_dwordx8 s[52:59], s[0:1], 64
    s_load_dwordx2 s[60:61], s[0:1], 104
    ''')
    g.stamp(0)
    g(f'''
    v_lshrrev_b32 v1, 6, v0
    v_and_b32 v0, 63, v0
    v_readfirstlane_b32 s3, v1
    s_getpc_b64 s[6:7]
L_pc:
    s_lshr_b32 s8, s2, 3
    s_lshl_b32 s9, s8, 3
    s_add_u32 s9, s9, s3
    s_lshl_b32 s9, s9, 7
    s_min_u32 s9, s9, L_codeend-L_pc-4
    s_add_u32 s6, s6, s9
    s_addc_u32 s7, s7, 0
    s_lshr_b32 s4, s2, 4
    s_lshl_b32 s4, s4, 3
    s_and_b32 s9, s2, 7
    s_or_b32 s4, s4, s9
    v_and_b32 v1, 15, v0
    v_lshrrev_b32 v2, 4, v0
    v_and_b32 v3, 7, v0
    v_lshrrev_b32 v4, 3, v0
    s_bitcmp1_b32 s2, 3
    s_waitcnt lgkmcnt(0)
    s_load_dword s62, s[60:61], 0
    s_load_dword s100, s[6:7], 0
    s_cbranch_scc1 L_Y
    ''')
def masks_and_tag(g):
    g('''
    v_and_b32 v10, 1, v0
    v_lshlrev_b32 v10, 4, v10
    v_mov_b32 v11, 0xffff
    v_lshlrev_b32 v10, v10, v11
    ''')
    for r in range(4):
        m = 0x03030303 << (2*r)
        g(f's_mov_b32 s6, {m:#x}\ns_mov_b32 s7, {m:#x}\nv_cndmask_b32 v{5+r}, 0, v10, s[6:7]')
    g(f'''
    s_waitcnt lgkmcnt(0)
    s_add_u32 s62, s62, 1
    s_mul_i32 s63, s62, 0x9E3779B1
    s_and_b32 s63, s63, 0xBFFFBFFF
    v_mov_b32 v9, s63
    ''')

def e1_compute(g, xr, W, A, acc, xtag, wtags, qp, stampi=None):
    g.wait_vm(xtag)
    for t in range(5):
        g(f'v_lshl_or_b32 v{xr+t}, v{xr+t}, 16, v{xr+t}')
        g.diagA(A + 4*t, xr + t)
    for t in range(5):
        g.wait_vm(wtags[t])
        c = '0' if t == 0 else f'v[{acc}:{acc+3}]'
        g(f'v_mfma_f32_16x16x32_bf16 v[{acc}:{acc+3}], v[{A+4*t}:{A+4*t+3}], v[{W+4*t}:{W+4*t+3}], {c}')
    if stampi is not None: g.stamp(stampi)
    g(f'''
    s_lshl_b32 s6, {sW}, 9
    v_lshlrev_b32 v200, 5, v1
    v_lshl_add_u32 v200, v2, 4, v200
    v_add_u32 v200, s6, v200
    s_mov_b32 exec_hi, 0
    ds_write_b128 v200, v[{acc}:{acc+3}]
    s_mov_b32 exec_hi, -1
    s_waitcnt lgkmcnt(0)
    s_barrier
    ''')
def e1_publish(g, qp):
    g('v_lshlrev_b32 v200, 3, v0')
    for k in range(4):
        g(f'ds_read2st64_b64 v[{204+4*k}:{207+4*k}], v200 offset0:{2*k} offset1:{2*k+1}')
    g(f'''
    s_lshl_b32 s6, {sI}, 10
    s_add_u32 s6, s6, {qp}
    v_lshl_add_u32 v201, v0, 4, s6
    s_waitcnt lgkmcnt(0)
    ''')
    for k in range(1, 8):
        g(f'v_add_f32 v204, v204, v{204+2*k}\nv_add_f32 v205, v205, v{205+2*k}')
    g(f'''
    v_mov_b32 v206, v205
    v_mov_b32 v205, v9
    v_mov_b32 v207, v9
    global_store_dwordx4 v201, v[204:207], {WS} {ST}
    ''')
def q_sum_to_lds(g, ldsaddr_sexpr):
    g(f'''
    v_add_f32 v204, v204, v208
    v_add_f32 v206, v206, v210
    v_add_f32 v212, v212, v216
    v_add_f32 v214, v214, v218
    v_add_f32 v204, v204, v212
    v_add_f32 v206, v206, v214
    v_cvt_pk_bf16_f32 v204, v204, v206
    v_lshl_add_u32 v200, v0, 2, {ldsaddr_sexpr}
    ds_write_b32 v200, v204
    s_waitcnt lgkmcnt(0)
    ''')

def c2_tail(g, branch, val, W, W8, wtag):
    A = 176
    g.gemv32(val, A, W, 0, 200)
    g(f'''
    s_lshl_b32 s6, {sW}, 15
    s_lshl_b32 s7, {sI}, 6
    s_add_u32 s6, s6, s7
    s_add_u32 s6, s6, {H5 + branch*36*8192}
    v_and_b32 v201, 1, v2
    v_lshlrev_b32 v201, 14, v201
    v_lshrrev_b32 v202, 1, v2
    v_lshl_add_u32 v201, v202, 13, v201
    v_lshl_add_u32 v201, v1, 3, v201
    v_add_u32 v201, s6, v201
    ''')
    g.wait_vm0()
    g.gemv32_mm(A, W, 196)
    L = g.label('c2b8')
    g(f's_cmp_lg_u32 {sW}, 7\ns_cbranch_scc1 {L}')
    g.gemv32_mm(A, W8, 192)
    g('s_nop 7')
    g.fold(192)
    g(f'v_add_u32 v202, 0x8000, v201')
    g.exec_(0x00FF00FF, 0x00FF00FF)
    g(f'global_store_dwordx2 v202, v[192:193], {WS} {ST}')
    g.exec_all()
    g(f'{L}:')
    g('s_nop 7')
    g.fold(196)
    g.exec_(0x00FF00FF, 0x00FF00FF)
    g(f'global_store_dwordx2 v201, v[196:197], {WS} {ST}')
    g.exec_all()

def prog_Y(g):
    RED, QV, QVB, MX, LX, ORED = 0, 4096, 4352, 5120, 5248, 8192
    g('L_Y:')
    g(f'''
    s_lshr_b32 s12, {sI}, 2          ; h
    s_and_b32 s13, {sI}, 3           ; j
    s_mul_i32 s8, s13, 144
    s_mul_i32 s9, {sW}, 18
    s_add_u32 s8, s8, s9
    v_mul_u32_u24 v10, 5, v2
    v_lshrrev_b32 v11, 1, v2
    v_and_b32 v11, v11, v2
    v_sub_u32 v10, v10, v11
    v_add_u32 v10, s8, v10           ; rowbase
    v_lshlrev_b32 v22, 1, v10        ; x offset
    s_lshl_b32 s9, s12, 8
    v_lshlrev_b32 v10, 13, v10
    v_lshl_add_u32 v10, v1, 4, v10
    v_add_u32 v23, s9, v10
    v_mov_b32 v10, v23
    v_mov_b32 v16, 0
    v_mov_b32 v21, 0
    ''')
    for r in (40, 41, 42, 43, 76, 77, 78, 79): g(f'v_mov_b32 v{r}, 0')
    def xloads(base, ptr, tag):
        for t in range(5):
            if t == 4: g('s_mov_b32 exec_hi, 0')
            g.vmem(f'global_load_ushort v{base+t}, v22, {ptr} offset:{2*t}', tag)
        g('s_mov_b32 exec_hi, -1')
    def wloads(base, ptr, addr, tag):
        for t in range(5):
            if t: g(f'v_add_u32 v{addr}, 0x2000, v{addr}')
            if t == 4: g('s_mov_b32 exec_hi, 0')
            g.vmem(f'global_load_dwordx4 v[{base+4*t}:{base+4*t+3}], v{addr}, {ptr} {NT}', f'{tag}{t}')
        g('s_mov_b32 exec_hi, -1')
    xloads(12, AX, 'xa')
    wloads(24, WQ, 10, 'wq')
    g(f'''
    s_lshl_b32 s8, s13, 7
    s_lshl_b32 s10, {sW}, 4
    s_add_u32 s8, s8, s10
    v_add_u32 v11, s8, v1
    v_lshlrev_b32 v11, 13, v11
    v_lshl_add_u32 v11, v2, 4, v11
    v_add_u32 v11, s9, v11
    ''')
    for t in range(4):
        g.vmem(f'global_load_dwordx4 v[{44+4*t}:{47+4*t}], v11, {WUK} offset:{64*t} {NT}', 'wuk')
    xloads(17, BX, 'xb')
    g.stamp(1)
    masks_and_tag(g)
    e1_compute(g, 12, 24, 176, 196, 'xa', [f'wq{t}' for t in range(5)], QPA, 2)
    L = g.label('y1')
    g(f's_cmp_lg_u32 {sW}, 0\ns_cbranch_scc1 {L}')
    e1_publish(g, QPA)
    g(f's_lshl_b32 s6, s12, 12\ns_add_u32 s6, s6, {QPA}\nv_lshl_add_u32 v201, v0, 4, s6')
    sv = list(g.vm)
    g.poll([f'global_load_dwordx4 v[{204+4*k}:{207+4*k}], v201, {WS} offset:{1024*k} {LD}' for k in range(4)],
           [205+2*k for k in range(8)], 'h1')
    g.vm = sv
    g(f's_mov_b32 s6, {QV}')
    q_sum_to_lds(g, 's6')
    g(f'{L}:')
    g('s_barrier')
    g.stamp(3)
    g(f'v_lshlrev_b32 v200, 4, v2')
    for t in range(4): g(f'ds_read_b128 v[{176+4*t}:{179+4*t}], v200 offset:{QV+64*t}')
    g(f'''
    s_lshl_b32 s6, s12, 10
    s_lshl_b32 s7, s8, 1
    s_add_u32 s6, s6, s7
    s_add_u32 s6, s6, {QABS}
    v_lshl_add_u32 v201, v2, 3, s6
    s_mov_b32 s14, {f2u(C1):#x}
    ''')
    g.wait_vm('wuk', 'lgkmcnt(0)')
    for t in range(4):
        c = '0' if t == 0 else 'v[196:199]'
        g(f'v_mfma_f32_16x16x32_bf16 v[196:199], v[{44+4*t}:{47+4*t}], v[{176+4*t}:{179+4*t}], {c}')
    for r in range(4): g(f'v_mul_f32 v{196+r}, s14, v{196+r}')
    g('v_cvt_pk_bf16_f32 v196, v196, v197\nv_cvt_pk_bf16_f32 v197, v198, v199')
    g.exec_(0x00010001, 0x00010001)
    g.vmem(f'global_store_dwordx2 v201, v[196:197], {WS} {ST}')
    g.exec_all()
    g.wait_vm0()
    g('s_barrier')
    L = g.label('y2')
    g(f'''
    s_cmp_lg_u32 {sW}, 0
    s_cbranch_scc1 {L}
    s_lshr_b32 s6, s12, 1
    s_lshl_b32 s6, s6, 7
    s_and_b32 s7, s12, 1
    s_lshl_b32 s7, s7, 2
    s_add_u32 s7, s7, s13
    s_lshl_b32 s7, s7, 2
    s_add_u32 s6, s6, s7
    s_add_u32 s6, s6, {QFLAG}
    v_mov_b32 v201, s6
    s_mov_b64 exec, 1
    global_store_dword v201, v9, {WS} {ST}
    s_mov_b64 exec, -1
    {L}:
    ''')
    g.stamp(4)
    wloads(60, BWQ, 23, 'bq')
    g(f'''
    s_lshr_b32 s15, {sI}, 3
    s_and_b32 s16, {sI}, 7           ; chunk
    s_lshl_b32 s6, s15, 21
    s_lshl_b32 s7, s16, 16
    s_add_u32 s6, s6, s7
    s_lshl_b32 s7, {sW}, 13
    s_add_u32 s6, s6, s7
    s_add_u32 s6, s6, {6144*256 + 2048}
    v_lshlrev_b32 v10, 8, v1
    v_lshl_add_u32 v10, v2, 4, v10
    v_add_u32 v10, s6, v10           ; K offset
    v_lshlrev_b32 v11, 10, v2
    v_lshl_add_u32 v11, v1, 4, v11
    v_add_u32 v11, s6, v11           ; V offset
    ''')
    def kload(T):
        for t in range(4):
            r = 80 + 16*T + 4*t
            g.vmem(f'global_load_dwordx4 v[{r}:{r+3}], v10, {KC} offset:{4096*T-2048+64*t} {NT}', 'k')
    def vload(T):
        for rr in range(4):
            r = 112 + 16*T + 4*rr
            g.vmem(f'global_load_dwordx4 v[{r}:{r+3}], v11, {VC} offset:{4096*T-2048+256*rr} {NT}', f'v{T}{rr}')
    kload(0)
    g.vm = ['xb'] + g.vm
    e1_compute(g, 17, 60, 176, 196, 'xb', [f'bq{t}' for t in range(5)], QPB, 5)
    L = g.label('y3')
    g(f's_cmp_lg_u32 {sW}, 0\ns_cbranch_scc1 {L}')
    e1_publish(g, QPB)
    g(f'{L}:')
    kload(1)
    vload(0)
    gl = [f'global_load_dwordx4 v[{204+4*k}:{207+4*k}], v201, {WS} offset:{1024*k} {LD}' for k in range(4)]
    L = g.label('y4')
    g(f'''
    s_cmp_gt_u32 {sW}, 1
    s_cbranch_scc1 {L}
    s_lshl_b32 s6, s15, 1
    s_add_u32 s6, s6, {sW}
    s_lshl_b32 s6, s6, 12
    s_add_u32 s6, s6, {QPB}
    v_lshl_add_u32 v201, v0, 4, s6
    ''')
    for l in gl: g(l)
    g(f'{L}:')
    vload(1)
    L, Lok = g.label('y5'), g.label('y5ok')
    g(f's_cmp_gt_u32 {sW}, 1\ns_cbranch_scc1 {L}\ns_waitcnt vmcnt(4)')
    g.check([205+2*k for k in range(8)])
    g(f's_cbranch_scc1 {Lok}')
    sv = list(g.vm)
    g.poll(gl, [205+2*k for k in range(8)], 'h1b')
    g.vm = sv
    g(f'{Lok}:')
    g(f's_lshl_b32 s6, {sW}, 8\ns_add_u32 s6, s6, {QVB}')
    q_sum_to_lds(g, 's6')
    g(f'{L}:')
    g('s_barrier')
    g.stamp(6)
    g(f'''
    v_lshrrev_b32 v12, 3, v1
    v_lshlrev_b32 v13, 5, v12        ; head*32
    v_lshlrev_b32 v200, 8, v12
    v_lshl_add_u32 v200, v2, 4, v200
    ''')
    for t in range(4): g(f'ds_read_b128 v[{176+4*t}:{179+4*t}], v200 offset:{QVB+64*t}')
    g.wait_vm('k', 'lgkmcnt(0)')
    for T in range(2):
        for t in range(4):
            d = 192 + 4*T
            c = '0' if t == 0 else f'v[{d}:{d+3}]'
            g(f'v_mfma_f32_16x16x32_bf16 v[{d}:{d+3}], v[{80+16*T+4*t}:{83+16*T+4*t}], v[{176+4*t}:{179+4*t}], {c}')
    g(f'''
    s_lshl_b32 s6, {sW}, 2
    v_add_u32 v14, s6, v13
    v_max3_f32 v200, v192, v193, v194
    v_max3_f32 v200, v200, v195, v196
    v_max3_f32 v200, v200, v197, v198
    v_max_f32 v200, v200, v199
    ''')
    g.allred_hi('v_max_f32', [200], 202, (4, 5))
    g.exec_(0x0101, 0)
    g(f'ds_write_b32 v14, v200 offset:{MX}')
    g.exec_all()
    g(f'''
    s_lshl_b32 s6, {sI}, 5
    v_lshl_add_u32 v15, v4, 2, s6
    v_mul_u32_u24 v15, 1152, v15
    v_lshl_add_u32 v15, v3, 4, v15
    s_lshl_b32 s6, {sW}, 7
    v_add_u32 v16, s6, v15
    s_waitcnt lgkmcnt(0)
    s_barrier
    ds_read_b128 v[204:207], v13 offset:{MX}
    ds_read_b128 v[208:211], v13 offset:{MX+16}
    ''')
    for t in range(4):
        g.vmem(f'global_load_dwordx4 v[{144+4*t}:{147+4*t}], v16, {BWO} offset:{1152*t} {NT}', 'wo')
    L = g.label('y6')
    g(f's_cmp_lg_u32 {sW}, 7\ns_cbranch_scc1 {L}\nv_add_u32 v16, 0x400, v15')
    for t in range(4):
        g(f'global_load_dwordx4 v[{160+4*t}:{163+4*t}], v16, {BWO} offset:{1152*t} {NT}')
    g(f'{L}:')
    g(f'''
    s_waitcnt lgkmcnt(0)
    v_max3_f32 v200, v204, v205, v206
    v_max3_f32 v200, v200, v207, v208
    v_max3_f32 v200, v200, v209, v210
    v_max_f32 v200, v200, v211
    v_mul_f32 v200, s14, v200
    ''')
    for k in range(8): g(f'v_fma_f32 v{192+k}, v{192+k}, s14, -v200')
    for k in range(8): g(f'v_exp_f32 v{192+k}, v{192+k}')
    for k in range(8):
        g(f'v_cvt_pk_bf16_f32 v201, v{192+k}, v{192+k}')
        g.diagA(80 + 4*k, 201)
    g('''
    v_add_f32 v192, v192, v193
    v_add_f32 v194, v194, v195
    v_add_f32 v196, v196, v197
    v_add_f32 v198, v198, v199
    v_add_f32 v192, v192, v194
    v_add_f32 v196, v196, v198
    v_add_f32 v192, v192, v196
    ''')
    g.allred_hi('v_add_f32', [192], 202, (4, 5))
    g.exec_(0x0101, 0)
    g(f'ds_write_b32 v14, v192 offset:{LX}')
    g.exec_all()
    g(f'''
    s_lshl_b32 s6, {sW}, 10
    s_add_u32 s6, s6, {ORED}
    v_lshrrev_b32 v201, 1, v2
    v_lshlrev_b32 v201, 9, v201
    v_lshl_add_u32 v201, v1, 5, v201
    v_and_b32 v202, 1, v2
    v_lshl_add_u32 v201, v202, 4, v201
    v_add_u32 v201, s6, v201
    ''')
    g.stamp(7)
    for k in range(8):
        T, rr = k >> 2, k & 3
        g.wait_vm(f'v{T}{rr}')
        c = '0' if k == 0 else 'v[196:199]'
        g(f'v_mfma_f32_16x16x32_bf16 v[196:199], v[{80+4*k}:{83+4*k}], v[{112+4*k}:{115+4*k}], {c}')
    g('ds_write_b128 v201, v[196:199]\ns_waitcnt lgkmcnt(0)\ns_barrier')
    g.stamp(8)
    L = g.label('y7')
    g(f's_cmp_lg_u32 {sW}, 0\ns_cbranch_scc1 {L}')
    g(f'v_lshlrev_b32 v200, 4, v0\nv_lshrrev_b32 v201, 5, v0\nv_lshlrev_b32 v201, 5, v201')
    for k in range(8): g(f'ds_read_b128 v[{80+4*k}:{83+4*k}], v200 offset:{ORED+1024*k}')
    g(f'''
    ds_read_b128 v[204:207], v201 offset:{MX}
    ds_read_b128 v[208:211], v201 offset:{MX+16}
    ds_read_b128 v[212:215], v201 offset:{LX}
    ds_read_b128 v[216:219], v201 offset:{LX+16}
    s_lshl_b32 s6, s15, 13
    s_lshl_b32 s7, s16, 7
    s_add_u32 s6, s6, s7
    s_add_u32 s6, s6, {H3B}
    v_lshlrev_b32 v202, 10, v4
    v_lshl_add_u32 v202, v3, 4, v202
    v_add_u32 v202, s6, v202
    s_lshl_b32 s6, s15, 10
    s_lshl_b32 s7, s16, 4
    s_add_u32 s6, s6, s7
    s_add_u32 s6, s6, {H3BML}
    v_lshl_add_u32 v203, v4, 7, s6
    s_waitcnt lgkmcnt(4)
    ''')
    for k in range(1, 8):
        for r in range(4): g(f'v_add_f32 v{80+r}, v{80+r}, v{80+4*k+r}')
    g(f'''
    v_cvt_pk_bf16_f32 v80, v80, v81
    v_cvt_pk_bf16_f32 v82, v82, v83
    v_mov_b32 v81, v9
    v_mov_b32 v83, v9
    global_store_dwordx4 v202, v[80:83], {WS} {ST}
    s_waitcnt lgkmcnt(0)
    v_max3_f32 v204, v204, v205, v206
    v_max3_f32 v204, v204, v207, v208
    v_max3_f32 v204, v204, v209, v210
    v_max_f32 v204, v204, v211
    v_mul_f32 v204, s14, v204
    v_add_f32 v212, v212, v213
    v_add_f32 v214, v214, v215
    v_add_f32 v216, v216, v217
    v_add_f32 v218, v218, v219
    v_add_f32 v212, v212, v214
    v_add_f32 v216, v216, v218
    v_add_f32 v206, v212, v216
    v_mov_b32 v205, v9
    v_mov_b32 v207, v9
    ''')
    g.exec_(0x01010101, 0x01010101)
    g(f'global_store_dwordx4 v203, v[204:207], {WS} {ST}')
    g.exec_all()
    g(f'{L}:')
    g(f'''
    s_lshl_b32 s6, {sI}, 10
    s_add_u32 s6, s6, {H3B}
    v_lshlrev_b32 v202, 7, v3
    v_lshl_add_u32 v202, v4, 4, v202
    v_add_u32 v202, s6, v202
    s_lshl_b32 s6, {sI}, 7
    s_add_u32 s6, s6, {H3BML}
    v_lshl_add_u32 v203, v3, 4, s6
    ''')
    g.poll([f'global_load_dwordx4 v[204:207], v202, {WS} {LD}', f'global_load_dwordx4 v[208:211], v203, {WS} {LD}'],
           [205, 207, 209, 211], 'h3b')
    g.stamp(9)
    g('v_mov_b32 v212, v208')
    g.allred_lo('v_max_f32', [212])
    g('''
    v_sub_f32 v208, v208, v212
    v_exp_f32 v208, v208
    v_lshlrev_b32 v212, 16, v204
    v_and_b32 v213, 0xffff0000, v204
    v_lshlrev_b32 v214, 16, v206
    v_and_b32 v215, 0xffff0000, v206
    v_mul_f32 v216, v208, v210
    v_mul_f32 v212, v208, v212
    v_mul_f32 v213, v208, v213
    v_mul_f32 v214, v208, v214
    v_mul_f32 v215, v208, v215
    ''')
    g.allred_lo('v_add_f32', [216, 212, 213, 214, 215])
    g('v_rcp_f32 v216, v216')
    for t in range(4): g(f'v_mul_f32 v{212+t}, v216, v{212+t}')
    c2_tail(g, 1, 212, 144, 160, 'wo')
    g.stamp(10)
    g('s_branch L_end')

def prog_X(g):
    LCKV, LQA, LP, LMX, LMCU, LACC, LML2 = 0, 131072, 147456, 151552, 152064, 0, 16384
    f = lambda i: ((i & 7) << 1) | (i >> 3)
    g(f'''
    s_bfe_u32 s12, {sI}, 0x10003     ; g
    s_lshr_b32 s13, {sI}, 4
    s_lshl_b32 s13, s13, 3
    s_and_b32 s6, {sI}, 7
    s_or_b32 s13, s13, s6            ; s
    s_lshl_b32 s6, s13, 17
    s_lshl_b32 s14, {sW}, 14         ; 16w*1024
    s_add_u32 s6, s6, s14
    v_lshlrev_b32 v20, 4, v0         ; l*16
    v_add_u32 v10, s6, v20
    ''')
    for i in range(16):
        if i % 4 == 0: g(f's_add_u32 m0, s14, {LCKV + (i//4)*4096}')
        g(f'v_xor_b32 v11, {(f(i) << 4) | ((i >> 2) << 12):#x}, v10')
        g.vmem(f'global_load_lds_dwordx4 v11, {CKV} offset:{(i%4)*1024} {NT}', 'ckv')
    g.stamp(1)
    masks_and_tag(g)
    g(f'''
    v_lshlrev_b32 v16, 1, v3
    v_lshrrev_b32 v17, 3, v1
    v_or_b32 v16, v16, v17           ; f(n)
    v_lshlrev_b32 v17, 2, v2
    v_xor_b32 v16, v16, v17
    v_lshlrev_b32 v16, 4, v16
    v_lshl_add_u32 v16, v1, 10, v16
    v_add_u32 v12, s14, v16
    v_xor_b32 v13, 0x10, v12
    v_xor_b32 v14, 0x20, v12
    v_xor_b32 v15, 0x30, v12
    ''')
    g(f'''
    v_bfe_u32 v21, v0, 2, 2          ; r
    v_and_b32 v22, 1, v2
    v_lshl_add_u32 v21, v22, 2, v21  ; 4(kg&1)+r
    v_lshrrev_b32 v22, 1, v2
    v_lshl_add_u32 v22, v22, 4, v21  ; key0
    v_lshlrev_b32 v21, 1, v21        ; f0
    v_bfe_u32 v23, v0, 1, 1          ; cq>>1
    s_lshl_b32 s6, {sW}, 3
    v_add_u32 v23, s6, v23           ; chunk0
    v_xor_b32 v23, v23, v21
    v_lshlrev_b32 v23, 4, v23
    v_lshl_add_u32 v23, v22, 10, v23
    v_and_b32 v21, 1, v0
    v_lshl_add_u32 v18, v21, 3, v23
    ''')
    g.wait_vm0()
    g.stamp(2)
    for t in range(16):
        g(f'ds_read_b128 v[{32+4*t}:{35+4*t}], v{12+(t&3)} offset:{256*(t>>2)}')
        if t == 7: g('s_waitcnt lgkmcnt(4)')
    g('s_waitcnt lgkmcnt(8)\ns_barrier')
    for half in range(2):
        if half: g('v_add_u32 v18, 0x10000, v18')
        for ct in range(4):
            for u in range(2):
                g(f'v_xor_b32 v19, {(ct << 5) | (u << 4):#x}, v18')
                for tl in range(2):
                    ts = 2*half + tl
                    r = 96 + (ts*4 + ct)*4 + 2*u
                    g(f'ds_read_b64_tr_b16 v[{r}:{r+1}], v19 offset:{u*8192 + tl*32768}')
            g('s_waitcnt lgkmcnt(8)')
    g(f's_sub_u32 s6, {LQA}, s14')
    for q in range(4): g(f'v_add_u32 v{12+q}, s6, v{12+q}')
    L, Lok = g.label('h2'), g.label('h2ok')
    g(f'''
    s_lshl_b32 s6, s12, 3
    s_add_u32 s6, s6, {sW}
    s_lshl_b32 s6, s6, 7
    s_add_u32 s6, s6, {QFLAG}
    s_add_u32 s16, s60, s6
    s_addc_u32 s17, s61, 0
    s_mov_b32 s18, s63
    s_mov_b32 s19, s63
    s_mov_b32 s5, 0
    s_waitcnt lgkmcnt(0)
    ''')
    g.stamp(3)
    g(f'''
    {L}:
    s_load_dwordx8 s[64:71], s[16:17], 0 glc
    s_waitcnt lgkmcnt(0)
    s_xor_b64 s[64:65], s[64:65], s[18:19]
    s_xor_b64 s[66:67], s[66:67], s[18:19]
    s_xor_b64 s[68:69], s[68:69], s[18:19]
    s_xor_b64 s[70:71], s[70:71], s[18:19]
    s_or_b64 s[64:65], s[64:65], s[66:67]
    s_or_b64 s[68:69], s[68:69], s[70:71]
    s_or_b64 s[64:65], s[64:65], s[68:69]
    s_cbranch_scc0 {Lok}
    s_add_u32 s5, s5, 1
    s_cmp_lt_u32 s5, {SPIN}
    s_cbranch_scc1 {L}
    s_branch L_end
    {Lok}:
    ''')
    g.stamp(4)
    g(f'''
    s_lshl_b32 s6, {sW}, 1           ; hh
    s_and_b32 s7, s6, 7
    s_lshl_b32 s7, s7, 1
    s_lshr_b32 s8, s6, 3
    s_or_b32 s7, s7, s8
    s_lshl_b32 s7, s7, 4             ; f(hh)<<4
    s_lshl_b32 s8, s12, 14
    s_lshl_b32 s9, s6, 10
    s_add_u32 s8, s8, s9
    s_add_u32 s8, s8, {QABS}
    s_add_u32 m0, s9, {LQA}
    v_xor_b32 v11, s7, v20
    v_add_u32 v11, s8, v11
    ''')
    g.vmem(f'global_load_lds_dwordx4 v11, {WS} {LD}', 'qa')
    g('v_xor_b32 v11, 0x20, v11')
    g.vmem(f'global_load_lds_dwordx4 v11, {WS} offset:1024 {LD}', 'qa')
    g(f'''
    s_lshr_b32 s20, {sI}, 4          ; hq
    s_and_b32 s21, {sI}, 15          ; cs
    s_lshr_b32 s6, s21, 1
    s_lshl_b32 s6, s6, 6
    s_and_b32 s7, s21, 1
    s_lshl_b32 s7, s7, 3
    s_add_u32 s6, s6, s7
    v_add_u32 v11, s6, v4
    v_lshlrev_b32 v11, 13, v11
    v_lshl_add_u32 v11, v3, 4, v11
    s_lshl_b32 s6, s20, 10
    s_lshl_b32 s7, {sW}, 7
    s_add_u32 s6, s6, s7
    v_add_u32 v11, s6, v11
    ''')
    for t in range(4):
        if t: g('v_add_u32 v11, 0x20000, v11')
        g.vmem(f'global_load_dwordx4 v[{224+4*t}:{227+4*t}], v11, {WUV} {NT}', 'wuv')
    g.wait_vm('qa')
    g('s_barrier')
    g.stamp(5)
    def qread(t): g(f'ds_read_b128 v[{160+4*t}:{163+4*t}], v{12+(t&3)} offset:{256*(t>>2)}')
    for t in range(8): qread(t)
    for t in range(16):
        issued = min(16, 8 + t)
        g(f's_waitcnt lgkmcnt({issued - t - 1})')
        c = '0' if t == 0 else 'v[24:27]'
        g(f'v_mfma_f32_16x16x32_bf16 v[24:27], v[{32+4*t}:{35+4*t}], v[{160+4*t}:{163+4*t}], {c}')
        if t + 8 < 16: qread(t + 8)
    g(f'''
    s_lshl_b32 s6, {sW}, 2
    v_lshlrev_b32 v21, 5, v1
    v_add_u32 v22, s6, v21
    v_max3_f32 v28, v24, v25, v26
    v_max_f32 v28, v28, v27
    ''')
    g.allred_hi('v_max_f32', [28], 29, (4, 5))
    g.exec_(0xFFFF, 0)
    g(f'ds_write_b32 v22, v28 offset:{LMX - 131072}' if False else f'v_add_u32 v22, {LMX}, v22\nds_write_b32 v22, v28')
    g.exec_all()
    g(f'''
    v_add_u32 v21, {LMX}, v21
    s_lshr_b32 s6, {sW}, 1
    s_lshl_b32 s6, s6, 10
    s_and_b32 s7, {sW}, 1
    s_lshl_b32 s7, s7, 9
    s_add_u32 s6, s6, s7
    s_add_u32 s6, s6, {LP}
    v_and_b32 v23, 1, v2
    v_lshlrev_b32 v23, 8, v23
    v_lshl_add_u32 v23, v1, 4, v23
    v_lshrrev_b32 v22, 1, v2
    v_lshl_add_u32 v23, v22, 3, v23
    v_add_u32 v23, s6, v23
    s_waitcnt lgkmcnt(0)
    s_barrier
    ds_read_b128 v[160:163], v21
    ds_read_b128 v[164:167], v21 offset:16
    v_lshlrev_b32 v22, 2, v1
    v_add_u32 v22, {LMCU}, v22
    s_waitcnt lgkmcnt(0)
    v_max3_f32 v28, v160, v161, v162
    v_max3_f32 v28, v28, v163, v164
    v_max3_f32 v28, v28, v165, v166
    v_max_f32 v28, v28, v167
    ''')
    for r in range(4): g(f'v_sub_f32 v{24+r}, v{24+r}, v28')
    for r in range(4): g(f'v_exp_f32 v{24+r}, v{24+r}')
    g(f'''
    v_cvt_pk_bf16_f32 v24, v24, v25
    v_cvt_pk_bf16_f32 v25, v26, v27
    ds_write_b64 v23, v[24:25]
    ds_write_b32 v22, v28
    v_add_u32 v21, {LP}, v20
    v_mov_b32 v176, 0x3f803f80
    v_mov_b32 v177, 0x3f803f80
    v_mov_b32 v178, 0x3f803f80
    v_mov_b32 v179, 0x3f803f80
    v_lshrrev_b32 v22, 2, v3
    v_and_b32 v23, 1, v3
    v_lshl_add_u32 v22, v23, 1, v22
    v_lshl_add_u32 v22, v2, 2, v22
    v_lshlrev_b32 v22, 2, v22
    v_add_u32 v22, {LMCU}, v22
    s_waitcnt lgkmcnt(0)
    s_barrier
    ''')
    g.stamp(6)
    for ts in range(4): g(f'ds_read_b128 v[{160+4*ts}:{163+4*ts}], v21 offset:{1024*ts}')
    g('ds_read_b32 v62, v22')
    g(f'''
    s_lshl_b32 s6, s12, 6
    s_lshl_b32 s7, {sW}, 1
    s_add_u32 s6, s6, s7
    v_lshrrev_b32 v23, 3, v1
    v_lshl_add_u32 v23, v2, 4, v23
    v_add_u32 v23, s6, v23           ; consumer
    v_mul_u32_u24 v23, 24576, v23
    s_mul_i32 s6, s13, 384
    s_add_u32 s6, s6, {H3}
    v_lshl_add_u32 v23, v3, 4, v23
    v_add_u32 v23, s6, v23
    ''')
    for ts in range(4):
        g(f's_waitcnt lgkmcnt({4 - ts})')
        for ct in range(5):
            d = 32 + 4*ct
            c = '0' if ts == 0 else f'v[{d}:{d+3}]'
            b = 96 + (ts*4 + ct)*4 if ct < 4 else 176
            g(f'v_mfma_f32_16x16x32_bf16 v[{d}:{d+3}], v[{160+4*ts}:{163+4*ts}], v[{b}:{b+3}], {c}')
    slot = {(0,0): 52, (0,1): 53, (1,0): 54, (2,0): 56, (2,1): 57, (3,0): 58, (1,1): 60, (3,1): 61}
    g('v_mov_b32 v55, v9\nv_mov_b32 v59, v9\nv_mov_b32 v63, v9')
    g('s_mov_b32 s6, 0xf0f0f0f0\ns_mov_b32 s7, 0xf0f0f0f0\ns_mov_b32 s8, 0xaaaaaaaa\ns_mov_b32 s9, 0xaaaaaaaa\ns_mov_b32 s10, 0xcccccccc\ns_mov_b32 s11, 0xcccccccc')
    order = [(0,0), (0,1), (1,0), (2,0), (2,1), (3,0), (1,1), (3,1)]
    for k, (r, hf) in enumerate(order):
        g(f'v_cvt_pk_bf16_f32 v{slot[(r,hf)]}, v{32+8*hf+r}, v{36+8*hf+r}')
        if k == 2: g.vmem(f'global_store_dwordx4 v23, v[52:55], {WS} {ST}')
        if k == 5: g.vmem(f'global_store_dwordx4 v23, v[56:59], {WS} offset:128 {ST}')
    g(f'''
    v_cndmask_b32 v48, v48, v49, s[6:7]
    v_cndmask_b32 v50, v50, v51, s[6:7]
    v_cndmask_b32 v48, v48, v50, s[8:9]
    s_waitcnt lgkmcnt(0)
    v_cndmask_b32 v62, v62, v48, s[10:11]
    ''')
    g.vmem(f'global_store_dwordx4 v23, v[60:63], {WS} offset:256 {ST}')
    g.stamp(7)
    g(f'''
    s_mul_i32 s6, {sI}, 24576
    s_mul_i32 s7, {sW}, 3072
    s_add_u32 s6, s6, s7
    s_add_u32 s6, s6, {H3}
    v_mul_u32_u24 v23, 384, v4
    v_lshl_add_u32 v23, v3, 4, v23
    v_add_u32 v23, s6, v23
    ''')
    g.poll([f'global_load_dwordx4 v[{64+4*i}:{67+4*i}], v23, {WS} offset:{128*i} {LD}' for i in range(3)], [67, 71, 75], 'h3')
    g.stamp(8)
    g(f'''
    s_lshr_b32 s6, {sI}, 1
    s_lshl_b32 s6, s6, 6             ; h*128 + 64*dh
    s_and_b32 s7, {sI}, 1
    s_lshl_b32 s7, s7, 2
    s_add_u32 s6, s6, s7
    v_and_b32 v10, 3, v4
    v_lshlrev_b32 v10, 4, v10
    v_lshrrev_b32 v11, 2, v4
    v_lshl_add_u32 v10, v11, 1, v10
    v_add_u32 v10, s6, v10
    v_mul_u32_u24 v10, 1152, v10
    v_lshl_add_u32 v10, v3, 4, v10
    s_lshl_b32 s6, {sW}, 7
    v_add_u32 v11, s6, v10
    ''')
    def woloads(base, addr, track):
        for t in range(4):
            if t == 2: g(f'v_add_u32 v{addr}, 9216, v{addr}')
            s = f'global_load_dwordx4 v[{base+4*t}:{base+4*t+3}], v{addr}, {WO} offset:{1152*(t&1)} {NT}'
            g.vmem(s, 'wo') if track else g(s)
    woloads(96, 11, True)
    L = g.label('x8')
    g(f's_cmp_lg_u32 {sW}, 7\ns_cbranch_scc1 {L}\nv_add_u32 v11, 0x400, v10')
    woloads(112, 11, False)
    g(f'{L}:')
    for k in range(4):
        g(f'v_mov_b32_dpp v{76+k}, v74 quad_perm:[{k},{k},{k},{k}] row_mask:0xf bank_mask:0xf')
    g('v_mov_b32 v80, v76\nv_mov_b32 v81, v77\nv_mov_b32 v67, v72\nv_mov_b32 v71, v73')
    g.allred_hi('v_max_f32', [80, 81], 82, (3, 4, 5))
    g('''
    v_sub_f32 v76, v76, v80
    v_sub_f32 v77, v77, v81
    v_exp_f32 v76, v76
    v_exp_f32 v77, v77
    v_cvt_pk_bf16_f32 v76, v76, v76
    v_cvt_pk_bf16_f32 v77, v77, v77
    ''')
    g.diagA(84, 76); g.diagA(88, 77)
    g('''
    v_mfma_f32_16x16x32_bf16 v[32:35], v[84:87], v[64:67], 0
    v_mfma_f32_16x16x32_bf16 v[36:39], v[88:91], v[68:71], 0
    v_and_b32 v76, 0xffff0000, v76
    v_and_b32 v77, 0xffff0000, v77
    v_mul_f32 v78, v76, v78
    v_mul_f32 v79, v77, v79
    ''')
    g.allred_hi('v_add_f32', [78, 79], 82, (3, 4, 5))
    g(f'''
    s_lshl_b32 s6, {sW}, 10
    v_and_b32 v21, 1, v2
    v_lshlrev_b32 v21, 8, v21
    v_lshrrev_b32 v22, 1, v2
    v_lshl_add_u32 v21, v22, 7, v21
    v_lshl_add_u32 v21, v3, 4, v21
    v_add_u32 v21, s6, v21
    s_lshl_b32 s6, {sW}, 3
    v_lshl_add_u32 v22, v0, 4, s6
    v_mov_b32 v82, v81
    v_mov_b32 v81, v78
    v_mov_b32 v83, v79
    ''')
    g.exec_(0x00FF00FF, 0xFF00FF00)
    g(f'ds_write_b128 v21, v[32:35] offset:{LACC}\nds_write_b128 v21, v[36:39] offset:{LACC+512}')
    g.exec_(0x11, 0)
    g(f'ds_write_b64 v22, v[80:81] offset:{LML2}\nds_write_b64 v22, v[82:83] offset:{LML2+128}')
    g.exec_all()
    g(f'''
    s_lshr_b32 s22, {sW}, 1          ; hh
    s_lshl_b32 s6, s22, 8
    v_lshlrev_b32 v21, 10, v3
    v_lshl_add_u32 v21, v4, 4, v21
    v_add_u32 v21, s6, v21
    s_lshl_b32 s6, s22, 6
    v_lshl_add_u32 v22, v3, 3, s6
    s_waitcnt lgkmcnt(0)
    s_barrier
    ds_read_b64 v[80:81], v22 offset:{LML2}
    ds_read_b128 v[32:35], v21 offset:{LACC}
    ds_read_b128 v[36:39], v21 offset:{LACC+128}
    s_lshl_b32 s6, s20, 4
    s_lshl_b32 s7, {sW}, 1
    s_add_u32 s6, s6, s7
    s_lshl_b32 s6, s6, 11
    s_lshl_b32 s7, s21, 7
    s_add_u32 s6, s6, s7
    s_add_u32 s6, s6, {H4}
    v_and_b32 v23, 1, v2
    v_lshlrev_b32 v23, 11, v23
    v_lshrrev_b32 v24, 1, v2
    v_lshl_add_u32 v23, v24, 6, v23
    v_lshl_add_u32 v23, v1, 3, v23
    v_add_u32 v23, s6, v23
    s_waitcnt lgkmcnt(2)
    v_mov_b32 v82, v80
    ''')
    g.allred_lo('v_max_f32', [82])
    g('''
    v_sub_f32 v80, v80, v82
    v_exp_f32 v80, v80
    s_waitcnt lgkmcnt(0)
    ''')
    for t in range(4): g(f'v_add_f32 v{32+t}, v{32+t}, v{36+t}')
    g('v_mul_f32 v81, v80, v81')
    for t in range(4): g(f'v_mul_f32 v{32+t}, v80, v{32+t}')
    g.allred_lo('v_add_f32', [81, 32, 33, 34, 35])
    g('v_rcp_f32 v81, v81')
    for t in range(4): g(f'v_mul_f32 v{32+t}, v81, v{32+t}')
    g.gemv32(32, 176, 224, 0, 200)
    g.gemv32_mm(176, 224, 196)
    g.fold(196)
    g.exec_(0x00FF00FF, 0x00FF00FF)
    g.vmem(f'global_store_dwordx2 v23, v[196:197], {WS} {ST}')
    g.exec_all()
    g.stamp(9)
    g(f'''
    s_lshl_b32 s6, {sI}, 11
    s_add_u32 s6, s6, {H4}
    v_lshlrev_b32 v23, 7, v3
    v_lshl_add_u32 v23, v4, 4, v23
    v_add_u32 v23, s6, v23
    ''')
    g.poll([f'global_load_dwordx4 v[{64+4*u}:{67+4*u}], v23, {WS} offset:{1024*u} {LD}' for u in range(2)], [65, 67, 69, 71], 'h4')
    g.stamp(10)
    g('''
    v_lshlrev_b32 v32, 16, v64
    v_and_b32 v33, 0xffff0000, v64
    v_lshlrev_b32 v34, 16, v66
    v_and_b32 v35, 0xffff0000, v66
    v_lshlrev_b32 v36, 16, v68
    v_and_b32 v37, 0xffff0000, v68
    v_lshlrev_b32 v38, 16, v70
    v_and_b32 v39, 0xffff0000, v70
    ''')
    for t in range(4): g(f'v_add_f32 v{32+t}, v{32+t}, v{36+t}')
    g.allred_lo('v_add_f32', [32, 33, 34, 35])
    c2_tail(g, 0, 32, 96, 112, 'wo')
    g(f'''
    s_cmp_lg_u32 {sW}, 0
    s_cbranch_scc1 L_end
    s_cmp_ge_u32 {sI}, 72
    s_cbranch_scc1 L_end
    s_lshl_b32 s6, {sI}, 13
    s_add_u32 s6, s6, {H5 + 4096}
    v_add_u32 v23, s6, v20
    v_and_b32 v32, 0x3f803f80, v5
    v_mov_b32 v33, 0
    v_and_b32 v34, 0x3f803f80, v7
    v_mov_b32 v35, 0
    s_cmp_ge_u32 {sI}, 36
    s_cselect_b32 s6, 36, 0
    s_cselect_b32 s7, 576, 0
    s_sub_u32 s6, {sI}, s6
    s_lshr_b32 s8, s6, 2
    s_lshl_b32 s8, s8, 6
    s_and_b32 s9, s6, 3
    s_lshl_b32 s9, s9, 1
    s_add_u32 s7, s7, s8
    s_add_u32 s7, s7, s9
    s_lshl_b32 s7, s7, 1
    v_lshlrev_b32 v24, 5, v1
    v_lshl_add_u32 v24, v2, 4, v24
    v_add_u32 v24, s7, v24
    ''')
    g.poll([f'global_load_dwordx4 v[{64+4*u}:{67+4*u}], v23, {WS} offset:{1024*u-4096} {LD}' for u in range(8)],
           [65+2*k for k in range(16)], 'h5')
    for u in range(8):
        c = '0' if u == 0 else 'v[36:39]'
        g(f'v_mfma_f32_16x16x32_bf16 v[36:39], v[32:35], v[{64+4*u}:{67+4*u}], {c}')
    for m in ('row_ror:4', 'row_ror:8'):
        for x in (36, 37): g(f'v_add_f32_dpp v{x}, v{x}, v{x} {m} row_mask:0xf bank_mask:0xf')
    g('v_cvt_pk_bf16_f32 v36, v36, v37')
    g.exec_(0x000F000F, 0)
    g(f'global_store_dword v24, v36, {OUT} {ST}')
    g(f'''
    s_cmp_lg_u32 {sI}, 0
    s_cbranch_scc1 L_fin
    s_mov_b64 exec, 1
    v_mov_b32 v36, s62
    v_mov_b32 v37, 0
    global_store_dword v37, v36, {WS} {ST}
    L_fin:
    s_mov_b64 exec, -1
    ''')
    g.stamp(11)

def build(stamps=False):
    g = G(stamps)
    prologue(g)
    prog_X(g)
    g('s_branch L_end')
    g.vm = []
    prog_Y(g)
    g('L_end:')
    g.flush_stamps()
    g('L_exit:\ns_endpgm\nL_codeend:')
    return wrap(g.text(), 256, 512, 153600, vgpr=256, sgpr=102, accum=256)

if __name__ == '__main__':
    open('v1.s', 'w').write(build(False))
    open('v1_st.s', 'w').write(build(True))
```
